```python
import torch

def _softmax(x, axis=-1):
    return torch.softmax(x, dim=axis)
def _gelu(x):
    return torch.nn.functional.gelu(x, approximate="tanh")
def _silu(x):
    return torch.nn.functional.silu(x)
def _sigmoid(x):
    return torch.sigmoid(x)
def _layernorm(x, axis=-1, eps=1e-5):
    m = x.mean(dim=axis, keepdim=True)
    v = x.var(dim=axis, keepdim=True, unbiased=False)
    return (x - m) / torch.sqrt(v + eps)
def _scatter_add(tgt, idx, src, axis=0):
    return tgt.clone().index_add_(axis, idx, src)
def _segment_sum(src, seg, n):
    out = torch.zeros((n,) + src.shape[1:], dtype=src.dtype)
    return out.index_add_(0, seg, src)
def _pad(x, pw):
    flat = tuple(v for pair in reversed(pw) for v in pair)
    return torch.nn.functional.pad(x, flat)

kernel_name = 'sequential_preLN__ssm_conv_s4d__glu_gated_glu__prompt'

def setup_inputs():

    _w = (lambda a: (lambda t: t.to(torch.bfloat16) if t.is_floating_point() else t)(torch.as_tensor(a)))
    def _A_setup():
        Bsz, L, D, N = 1, 2048, 512, 128
        return {
            "u": _w((lambda *s: torch.randn(*s, dtype=torch.bfloat16) * 0.05)(Bsz, L, D)),
            "log_A_real": _w((lambda *s: torch.randn(*s, dtype=torch.bfloat16) * 6.4)(D, N) * 0.5),
            "A_imag": _w((lambda *s: torch.randn(*s, dtype=torch.bfloat16) * 0.05)(D, N) * 3.14),
            "C_real": _w((lambda *s: torch.randn(*s, dtype=torch.bfloat16) * 0.05)(D, N) / N ** 0.5),
            "C_imag": _w((lambda *s: torch.randn(*s, dtype=torch.bfloat16) * 0.05)(D, N) / N ** 0.5),
            "log_dt": _w((lambda *s: torch.randn(*s, dtype=torch.bfloat16) * 0.05)(D) * 0.5 - 4.0),
            "D_skip": _w((lambda *s: torch.randn(*s, dtype=torch.bfloat16) * 0.05)(D)),
        }
    _A_in = _A_setup()

    def _B_setup():
        B, S, D, F = 1, 2048, 512, 1376
        return {
            "x": _w((lambda *s: torch.randn(*s, dtype=torch.bfloat16) * 0.05)(B, S, D)),
            "w_gate": _w((lambda *s: torch.randn(*s, dtype=torch.bfloat16) * 0.05)(D, F)),
            "w_up": _w((lambda *s: torch.randn(*s, dtype=torch.bfloat16) * 0.05)(D, F)),
            "w_down": _w((lambda *s: torch.randn(*s, dtype=torch.bfloat16) * 0.05)(F, D)),
        }
    _B_in = _B_setup()

    return {
        "A_u": _A_in["u"],
        "A_log_A_real": _A_in["log_A_real"],
        "A_A_imag": _A_in["A_imag"],
        "A_C_real": _A_in["C_real"],
        "A_C_imag": _A_in["C_imag"],
        "A_log_dt": _A_in["log_dt"],
        "A_D_skip": _A_in["D_skip"],
        "B_x": _B_in["x"],
        "B_w_gate": _B_in["w_gate"],
        "B_w_up": _B_in["w_up"],
        "B_w_down": _B_in["w_down"],
    }

def reference(A_u, A_log_A_real, A_A_imag, A_C_real, A_C_imag, A_log_dt, A_D_skip, B_x, B_w_gate, B_w_up, B_w_down):
    def _A_ref(u, log_A_real, A_imag, C_real, C_imag, log_dt, D_skip):
        L = u.shape[1]
        dt = torch.exp(log_dt)
        A = -torch.exp(log_A_real) + 1j * A_imag
        C = (C_real + 1j * C_imag) * dt[:, None]
        pos = (lambda x, dt: x.to(dt))(torch.arange(L), log_dt.dtype)
        P = torch.exp((A * dt[:, None])[:, :, None] * pos[None, None, :])
        K = 2.0 * torch.einsum("dn,dnl->dl", C, P).real
        L2 = 2 * L
        u_t = (lambda x, *d: x.permute(*d))(u, 0, 2, 1)
        Kf = (lambda x, *a, **k: torch.fft.rfft(x.float(), *a, **k))(K, L2)
        Uf = (lambda x, *a, **k: torch.fft.rfft(x.float(), *a, **k))(u_t, L2)
        y = (lambda x, *a, **k: torch.fft.irfft(x, *a, **k).to(torch.bfloat16))(Uf * Kf[None, :, :], L2)[:, :, :L]
        y = (lambda x, *d: x.permute(*d))(y, 0, 2, 1)
        return y + u * D_skip[None, None, :]

    def _B_ref(x, w_gate, w_up, w_down):
        g = torch.einsum("bsd,df->bsf", x, w_gate)
        u = torch.einsum("bsd,df->bsf", x, w_up)
        h = _sigmoid(g) * u
        return torch.einsum("bsf,fd->bsd", h, w_down)

    x = A_u
    h = x + _A_ref(_layernorm(x, axis=-1), A_log_A_real, A_A_imag, A_C_real, A_C_imag, A_log_dt, A_D_skip)
    h2 = h + _B_ref(_layernorm(h, axis=-1), B_w_gate, B_w_up, B_w_down)
    return h2
```

```python
import sys, re
src, out, name, mode = sys.argv[1:5]
mul = int(sys.argv[5]) if len(sys.argv) > 5 else 1
NAME = "sequential_preLN__ssm_conv_s4d__glu_gated_glu__prompt"
s = open(src).read()
idx = dict((nm, int(i)) for i, nm in re.findall(r"STAMP(\d+) (\w*)", s))
i = idx.get(name, 0)
s = s.replace("; @launch grid=(256,1,1) block=(256,1,1) lds=163840", f"; @launch kernel={NAME}_kernel grid=(256,1,1) block=(256,1,1) lds=163840\n; @launch kernel=probe_kernel grid=(1,1,1) block=(64,1,1) lds=0")
k = """.text
.globl probe_kernel
.p2align 8
.type probe_kernel,@function
probe_kernel:
    s_cmp_ge_u32 s2, 1
    s_cbranch_scc1 L_pend
    s_load_dwordx2 s[4:5], s[0:1], 104
    v_lshlrev_b32 v1, 6, v0
    v_add_u32 v1, 0x60000, v1
    s_waitcnt lgkmcnt(0)
"""
for j in range(16):
    k += f"    global_load_dword v{10+j}, v1, s[4:5]\n    global_load_dword v{30+j}, v1, s[4:5] offset:{4*i}\n    v_add_u32 v1, 4096, v1\n"
k += "    s_waitcnt vmcnt(0)\n    v_readfirstlane_b32 s6, v10\n    s_sub_u32 s6, s6, 100000\n    s_nop 2\n"
for j in range(16):
    k += f"    v_subrev_u32 v{10+j}, s6, v{10+j}\n    v_subrev_u32 v{30+j}, s6, v{30+j}\n"
op = {"max": "v_max_u32", "mean": "v_add_u32", "zero": "v_max_u32", "min": "v_min_u32"}[mode]
sop = {"max": "s_max_u32", "mean": "s_add_u32", "zero": "s_max_u32", "min": "s_min_u32"}[mode]
for j in range(1, 16):
    k += f"    v_min_u32 v10, v10, v{10+j}\n    {op} v30, v30, v{30+j}\n"
k += "    s_nop 1\n    v_readlane_b32 s8, v10, 0\n    v_readlane_b32 s9, v30, 0\n"
for l in range(1, 64):
    k += f"    v_readlane_b32 s10, v10, {l}\n    v_readlane_b32 s11, v30, {l}\n    s_nop 0\n    s_min_u32 s8, s8, s10\n    {sop} s9, s9, s11\n"
if mode == "mean": k += "    s_lshr_b32 s9, s9, 10\n"
k += f"    s_sub_u32 s9, s9, s8\n    s_mul_i32 s9, s9, {0 if mode == 'zero' else mul}\n    s_min_u32 s9, s9, 20000\n"
k += """    s_memrealtime s[12:13]
    s_waitcnt lgkmcnt(0)
L_pspin:
    s_memrealtime s[14:15]
    s_waitcnt lgkmcnt(0)
    s_sub_u32 s14, s14, s12
    s_cmp_lt_u32 s14, s9
    s_cbranch_scc1 L_pspin
L_pend:
    s_endpgm
.section .rodata,"a"
.p2align 6
.amdhsa_kernel probe_kernel
  .amdhsa_next_free_vgpr 64
  .amdhsa_next_free_sgpr 32
  .amdhsa_accum_offset 64
  .amdhsa_group_segment_fixed_size 0
  .amdhsa_kernarg_size 112
  .amdhsa_user_sgpr_count 2
  .amdhsa_user_sgpr_kernarg_segment_ptr 1
  .amdhsa_system_sgpr_workgroup_id_x 1
.end_amdhsa_kernel
"""
open(out, "w").write(s + k)
```

```python
import sys, re
src, out, name, mode = sys.argv[1:5]
mul = int(sys.argv[5]) if len(sys.argv) > 5 else 1
NAME = "sequential_preLN__ssm_conv_s4d__glu_gated_glu__prompt"
s = open(src).read()
idx = dict((nm, int(i)) for i, nm in re.findall(r"STAMP(\d+) (\w*)", s))
i = 15 if name == 'retry' else idx.get(name, 0)
s = s.replace("; @launch grid=(256,1,1) block=(256,1,1) lds=163840", f"; @launch kernel={NAME}_kernel grid=(256,1,1) block=(256,1,1) lds=163840\n; @launch kernel=probe_kernel grid=(1,1,1) block=(64,1,1) lds=0")
k = """.text
.globl probe_kernel
.p2align 8
.type probe_kernel,@function
probe_kernel:
    s_cmp_ge_u32 s2, 1
    s_cbranch_scc1 L_pend
    s_load_dwordx2 s[4:5], s[0:1], 104
    v_lshlrev_b32 v1, 6, v0
    v_add_u32 v1, 0x60000, v1
    s_waitcnt lgkmcnt(0)
"""
for j in range(16):
    k += f"    global_load_dword v{10+j}, v1, s[4:5]\n    global_load_dword v{30+j}, v1, s[4:5] offset:{4*i}\n    v_add_u32 v1, 4096, v1\n"
k += "    s_waitcnt vmcnt(0)\n    v_readfirstlane_b32 s6, v10\n    s_sub_u32 s6, s6, 100000\n    s_nop 2\n"
for j in range(16):
    k += f"    v_subrev_u32 v{10+j}, s6, v{10+j}\n" + ("" if name == 'retry' else f"    v_subrev_u32 v{30+j}, s6, v{30+j}\n")
op = {"max": "v_max_u32", "mean": "v_add_u32", "zero": "v_max_u32", "min": "v_min_u32"}[mode]
sop = {"max": "s_max_u32", "mean": "s_add_u32", "zero": "s_max_u32", "min": "s_min_u32"}[mode]
for j in range(1, 16):
    k += f"    v_min_u32 v10, v10, v{10+j}\n    {op} v30, v30, v{30+j}\n"
k += "    s_nop 1\n    v_readlane_b32 s8, v10, 0\n    v_readlane_b32 s9, v30, 0\n"
for l in range(1, 64):
    k += f"    v_readlane_b32 s10, v10, {l}\n    v_readlane_b32 s11, v30, {l}\n    s_nop 0\n    s_min_u32 s8, s8, s10\n    {sop} s9, s9, s11\n"
if name == 'retry': k += "    s_mov_b32 s8, 0\n"
elif mode == "mean": k += "    s_lshr_b32 s9, s9, 10\n"
k += f"    s_sub_u32 s9, s9, s8\n    s_mul_i32 s9, s9, {0 if mode == 'zero' else mul}\n    s_min_u32 s9, s9, 20000\n"
k += """    s_memrealtime s[12:13]
    s_waitcnt lgkmcnt(0)
L_pspin:
    s_memrealtime s[14:15]
    s_waitcnt lgkmcnt(0)
    s_sub_u32 s14, s14, s12
    s_cmp_lt_u32 s14, s9
    s_cbranch_scc1 L_pspin
L_pend:
    s_endpgm
.section .rodata,"a"
.p2align 6
.amdhsa_kernel probe_kernel
  .amdhsa_next_free_vgpr 64
  .amdhsa_next_free_sgpr 32
  .amdhsa_accum_offset 64
  .amdhsa_group_segment_fixed_size 0
  .amdhsa_kernarg_size 112
  .amdhsa_user_sgpr_count 2
  .amdhsa_user_sgpr_kernarg_segment_ptr 1
  .amdhsa_system_sgpr_workgroup_id_x 1
.end_amdhsa_kernel
"""
open(out, "w").write(s + k)
```
